```python
import torch

def _softmax(x, axis=-1):
    return torch.softmax(x, dim=axis)
def _gelu(x):
    return torch.nn.functional.gelu(x, approximate="tanh")
def _silu(x):
    return torch.nn.functional.silu(x)
def _sigmoid(x):
    return torch.sigmoid(x)
def _layernorm(x, axis=-1, eps=1e-5):
    m = x.mean(dim=axis, keepdim=True)
    v = x.var(dim=axis, keepdim=True, unbiased=False)
    return (x - m) / torch.sqrt(v + eps)
def _scatter_add(tgt, idx, src, axis=0):
    return tgt.clone().index_add_(axis, idx, src)
def _segment_sum(src, seg, n):
    out = torch.zeros((n,) + src.shape[1:], dtype=src.dtype)
    return out.index_add_(0, seg, src)
def _pad(x, pw):
    flat = tuple(v for pair in reversed(pw) for v in pair)
    return torch.nn.functional.pad(x, flat)

kernel_name = 'parallel_sum__ssm_conv_h3__swiglu_ffn__prompt'

def setup_inputs():

    _w = (lambda a: (lambda t: t.to(torch.bfloat16) if t.is_floating_point() else t)(torch.as_tensor(a)))
    def _A_setup():
        B, S, D = 1, 2048, 512
        ks = 4
        return {
            "q": _w((lambda *s: torch.randn(*s, dtype=torch.bfloat16) * 0.05)(B, S, D)),
            "k": _w((lambda *s: torch.randn(*s, dtype=torch.bfloat16) * 0.4)(B, S, D)),
            "v": _w((lambda *s: torch.randn(*s, dtype=torch.bfloat16) * 0.4)(B, S, D)),
            "shift_k": _w((lambda *s: torch.randn(*s, dtype=torch.bfloat16) * 0.4)(D, ks) * 0.5),
            "ssm_k": _w((lambda *s: torch.randn(*s, dtype=torch.bfloat16) * 1.6)(D, S) * (1.0 / S ** 0.5)),
            "ssm_D": _w((lambda *s: torch.randn(*s, dtype=torch.bfloat16) * 0.8)(D)),
        }
    _A_in = _A_setup()

    def _B_setup():
        B, S, D, F = 1, 2048, 512, 1376
        return {
            "x": _w((lambda *s: torch.randn(*s, dtype=torch.bfloat16) * 0.05)(B, S, D)),
            "w_gate": _w((lambda *s: torch.randn(*s, dtype=torch.bfloat16) * 0.05)(D, F)),
            "w_up": _w((lambda *s: torch.randn(*s, dtype=torch.bfloat16) * 0.05)(D, F)),
            "w_down": _w((lambda *s: torch.randn(*s, dtype=torch.bfloat16) * 0.05)(F, D)),
        }
    _B_in = _B_setup()

    return {
        "A_q": _A_in["q"],
        "A_k": _A_in["k"],
        "A_v": _A_in["v"],
        "A_shift_k": _A_in["shift_k"],
        "A_ssm_k": _A_in["ssm_k"],
        "A_ssm_D": _A_in["ssm_D"],
        "B_x": _B_in["x"],
        "B_w_gate": _B_in["w_gate"],
        "B_w_up": _B_in["w_up"],
        "B_w_down": _B_in["w_down"],
    }

def reference(A_q, A_k, A_v, A_shift_k, A_ssm_k, A_ssm_D, B_x, B_w_gate, B_w_up, B_w_down):
    def _A_ref(q, k, v, shift_k, ssm_k, ssm_D):
        B, S, D = q.shape
        ks = shift_k.shape[-1]
        k_pad = _pad(k, ((0, 0), (ks - 1, 0), (0, 0)))
        k_shift = torch.zeros_like(k)
        for t in range(ks):
            k_shift = k_shift + k_pad[:, t:t + S, :] * shift_k[:, ks - 1 - t][None, None, :]
        kv = k_shift * v
        L = 2 * S
        kv_pad = _pad(kv, ((0, 0), (0, S), (0, 0)))
        kf_pad = _pad(ssm_k, ((0, 0), (0, S)))
        kv_f = (lambda x, axes=(-2,-1): torch.fft.rfft2(x.float(), dim=axes))(kv_pad[:, None, :, :], axes=(1, 2))
        kf_f = (lambda x, axes=(-2,-1): torch.fft.rfft2(x.float(), dim=axes))(kf_pad[:, None, :], axes=(1, 2))
        kf_f = (lambda x, *d: x.permute(*d))(kf_f, 1, 2, 0)
        y_f = kv_f * kf_f[None, :, :, :]
        y = (lambda x, s, axes=(-2,-1): torch.fft.irfft2(x, s=s, dim=axes).to(torch.bfloat16))(y_f, (1, L), axes=(1, 2))[:, 0, :S, :]
        y = y + kv * ssm_D[None, None, :]
        return q * y

    def _B_ref(x, w_gate, w_up, w_down):
        g = _silu(x @ w_gate)
        u = x @ w_up
        return (g * u) @ w_down

    x = A_q
    xn = _layernorm(x, axis=-1)
    return x + _A_ref(xn, A_k, A_v, A_shift_k, A_ssm_k, A_ssm_D) + _B_ref(xn, B_w_gate, B_w_up, B_w_down)
```

```python
import sys

S = 2048; D = 512; F = 1376
NFT = 88
KS1 = 16
KS2 = 43
WS_XN  = 0
WS_WGU = WS_XN + 128*16*1024
WS_WD  = WS_WGU + 2*NFT*16*1024
WS_H   = WS_WD + 32*KS2*1024
WS_KVR = WS_H + 128*KS2*1024
WS_Y2T = WS_KVR + 512*4096
WS_END = WS_Y2T + 512*4096

out = []
def e(s=""): out.append(s)
def I(s): out.append("    " + s)

def header():
    e("""; Kernarg layout for this problem (104 bytes, ptrs only, base s[0:1]):
;   offset  96: d_ws      268435456 bytes workspace""")
    for l in LAUNCH: e(l)
    e('.amdgcn_target "amdgcn-amd-amdhsa--gfx950"')
    e('.text')

def kstart(name):
    e(f".globl {name}")
    e(".p2align 8")
    e(f".type {name},@function")
    e(f"{name}:")

def kdesc(name, vgpr, sgpr=96, accum=None, extra=""):
    acc = accum if accum is not None else ((vgpr + 3)//4)*4
    e('.section .rodata,"a"')
    e('.p2align 6')
    e(f".amdhsa_kernel {name}")
    e(f"  .amdhsa_next_free_vgpr {vgpr}")
    e(f"  .amdhsa_next_free_sgpr {sgpr}")
    e(f"  .amdhsa_accum_offset {acc}")
    e("  .amdhsa_group_segment_fixed_size 0")
    e("  .amdhsa_kernarg_size 104")
    e("  .amdhsa_user_sgpr_count 2")
    e("  .amdhsa_user_sgpr_kernarg_segment_ptr 1")
    e("  .amdhsa_system_sgpr_workgroup_id_x 1")
    e(".end_amdhsa_kernel")
    e(".text")

def srd(s, base_lo, base_hi, size):
    I(f"s_mov_b32 s{s}, s{base_lo}")
    I(f"s_mov_b32 s{s+1}, s{base_hi}")
    I(f"s_mov_b32 s{s+2}, {size}")
    I(f"s_mov_b32 s{s+3}, 0x00020000")

def srd_off(s, base_lo, base_hi, off, size):
    I(f"s_add_u32 s{s}, s{base_lo}, {off}")
    I(f"s_addc_u32 s{s+1}, s{base_hi}, 0")
    I(f"s_mov_b32 s{s+2}, {size}")
    I(f"s_mov_b32 s{s+3}, 0x00020000")

def wave_row_sum(v, t):
    I("s_nop 1")
    I(f"v_add_f32_dpp v{v}, v{v}, v{v} quad_perm:[1,0,3,2] row_mask:0xf bank_mask:0xf")
    I("s_nop 1")
    I(f"v_add_f32_dpp v{v}, v{v}, v{v} quad_perm:[2,3,0,1] row_mask:0xf bank_mask:0xf")
    I("s_nop 1")
    I(f"v_add_f32_dpp v{v}, v{v}, v{v} row_half_mirror row_mask:0xf bank_mask:0xf")
    I("s_nop 1")
    I(f"v_add_f32_dpp v{v}, v{v}, v{v} row_mirror row_mask:0xf bank_mask:0xf")
    I("s_nop 1")
    I(f"v_readlane_b32 s40, v{v}, 0")
    I(f"v_readlane_b32 s41, v{v}, 16")
    I(f"v_readlane_b32 s42, v{v}, 32")
    I(f"v_readlane_b32 s43, v{v}, 48")
    I("s_nop 1")
    I(f"v_mov_b32 v{t}, s40")
    I(f"v_add_f32 v{t}, s41, v{t}")
    I(f"v_add_f32 v{t}, s42, v{t}")
    I(f"v_add_f32 v{v}, s43, v{t}")

def bf_round(dst, src):
    I(f"v_cvt_pk_bf16_f32 v{dst}, v{src}, v{src}")
    I(f"v_lshlrev_b32 v{dst}, 16, v{dst}")

def k1():
    name = "k1_prep_kernel"
    kstart(name)
    I("s_load_dwordx4 s[4:7], s[0:1], 0")
    I("s_load_dwordx4 s[8:11], s[0:1], 16")
    I("s_load_dwordx4 s[12:15], s[0:1], 56")
    I("s_load_dwordx2 s[16:17], s[0:1], 72")
    I("s_load_dwordx2 s[18:19], s[0:1], 96")
    I("v_lshrrev_b32 v1, 6, v0")
    I("v_and_b32 v63, 63, v0")
    I("s_nop 0")
    I("v_readfirstlane_b32 s20, v1")
    I("s_lshl_b32 s21, s2, 2")
    I("s_add_u32 s20, s20, s21")
    I("s_waitcnt lgkmcnt(0)")
    I("s_cmp_lt_u32 s20, 2048")
    I("s_cbranch_scc1 K1_LN")
    I("s_cmp_lt_u32 s20, 2560")
    I("s_cbranch_scc1 K1_KV")
    I(f"s_cmp_lt_u32 s20, {2560+1032}")
    I("s_cbranch_scc1 K1_WT")
    I("s_endpgm")
    e("K1_LN:")
    srd(24, 4, 5, S*D*2)
    srd_off(28, 18, 19, WS_XN, 128*16*1024)
    I("s_lshl_b32 s22, s20, 10")
    I("v_lshlrev_b32 v1, 4, v63")
    I("buffer_load_dwordx4 v[4:7], v1, s[24:27], s22 offen")
    I("s_waitcnt vmcnt(0)")
    for i in range(4):
        I(f"v_lshlrev_b32 v{8+2*i}, 16, v{4+i}")
        I(f"v_and_b32 v{9+2*i}, 0xffff0000, v{4+i}")
    I("v_add_f32 v16, v8, v9")
    for i in range(2,8):
        I(f"v_add_f32 v16, v16, v{8+i}")
    wave_row_sum(16, 17)
    I("v_mul_f32 v16, 0x3b000000, v16")
    I("v_sub_f32 v18, v8, v16")
    I("v_mul_f32 v19, v18, v18")
    for i in range(1,8):
        I(f"v_sub_f32 v18, v{8+i}, v16")
        I(f"v_fmac_f32 v19, v18, v18")
    wave_row_sum(19, 17)
    I("v_mul_f32 v19, 0x3b000000, v19")
    bf_round(19, 19)
    I("v_add_f32 v19, 0x3727c5ac, v19")
    bf_round(19, 19)
    I("v_sqrt_f32 v19, v19")
    I("s_nop 0")
    bf_round(19, 19)
    bf_round(16, 16)
    I("v_rcp_f32 v20, v19")
    for i in range(8):
        I(f"v_sub_f32 v{8+i}, v{8+i}, v16")
    for i in range(4):
        I(f"v_cvt_pk_bf16_f32 v{4+i}, v{8+2*i}, v{9+2*i}")
    for i in range(4):
        I(f"v_lshlrev_b32 v{8+2*i}, 16, v{4+i}")
        I(f"v_and_b32 v{9+2*i}, 0xffff0000, v{4+i}")
    for i in range(8):
        I(f"v_mul_f32 v21, v{8+i}, v20")
        I(f"v_fma_f32 v22, -v21, v19, v{8+i}")
        I(f"v_fma_f32 v{8+i}, v22, v20, v21")
    for i in range(4):
        I(f"v_cvt_pk_bf16_f32 v{4+i}, v{8+2*i}, v{9+2*i}")
    I("s_lshr_b32 s23, s20, 4")
    I("s_lshl_b32 s23, s23, 14")
    I("s_and_b32 s22, s20, 15")
    I("s_lshl_b32 s22, s22, 4")
    I("s_add_u32 s23, s23, s22")
    I("v_lshrrev_b32 v1, 2, v63")
    I("v_lshlrev_b32 v1, 10, v1")
    I("v_and_b32 v2, 3, v63")
    I("v_lshlrev_b32 v2, 8, v2")
    I("v_add_u32 v1, v1, v2")
    I("buffer_store_dwordx4 v[4:7], v1, s[28:31], s23 offen")
    I("s_endpgm")
    e("K1_KV:")
    I("s_sub_u32 s20, s20, 2048")
    srd(24, 6, 7, S*D*2)
    srd(28, 8, 9, S*D*2)
    srd(32, 10, 11, D*4*2)
    srd_off(36, 18, 19, WS_KVR, 512*4096)
    I("s_and_b32 s21, s20, 7")
    I("s_lshr_b32 s22, s20, 3")
    I("s_lshl_b32 s21, s21, 6")
    I("v_add_u32 v1, s21, v63")
    I("v_lshlrev_b32 v2, 3, v1")
    I("buffer_load_dwordx2 v[4:5], v2, s[32:35], 0 offen")
    I("v_lshlrev_b32 v2, 1, v1")
    I("s_lshl_b32 s23, s22, 15")
    I("s_cmp_eq_u32 s22, 0")
    I("s_cbranch_scc1 K1_KV_FIRST")
    I("s_sub_u32 s44, s23, 3072")
    for i in range(3):
        I(f"buffer_load_ushort v{10+i}, v2, s[24:27], s44 offen offset:{i*1024}")
    I("s_branch K1_KV_GO")
    e("K1_KV_FIRST:")
    for i in range(3):
        I(f"v_mov_b32 v{10+i}, 0")
    e("K1_KV_GO:")
    for i in range(32):
        if i % 4 == 0:
            I(f"s_add_u32 s44, s23, {i*1024}")
        I(f"buffer_load_ushort v{13+i}, v2, s[24:27], s44 offen offset:{(i%4)*1024}")
    for i in range(32):
        if i % 4 == 0:
            I(f"s_add_u32 s44, s23, {i*1024}")
        I(f"buffer_load_ushort v{64+i}, v2, s[28:31], s44 offen offset:{(i%4)*1024}")
    I("s_waitcnt vmcnt(0)")
    I("v_lshlrev_b32 v6, 16, v4")
    I("v_and_b32 v7, 0xffff0000, v4")
    I("v_lshlrev_b32 v8, 16, v5")
    I("v_and_b32 v9, 0xffff0000, v5")
    for i in range(35):
        I(f"v_lshlrev_b32 v{10+i}, 16, v{10+i}")
    for i in range(32):
        I(f"v_lshlrev_b32 v{64+i}, 16, v{64+i}")
    for i in range(32):
        I(f"v_mul_f32 v50, v{10+i}, v9")
        I(f"v_mul_f32 v51, v{11+i}, v8")
        I(f"v_mul_f32 v52, v{12+i}, v7")
        I(f"v_mul_f32 v53, v{13+i}, v6")
        I(f"v_cvt_pk_bf16_f32 v50, v50, v51")
        I(f"v_cvt_pk_bf16_f32 v52, v52, v53")
        I(f"v_and_b32 v51, 0xffff0000, v50")
        I(f"v_lshlrev_b32 v50, 16, v50")
        I(f"v_and_b32 v53, 0xffff0000, v52")
        I(f"v_lshlrev_b32 v52, 16, v52")
        I(f"v_add_f32 v50, v50, v51")
        bf_round(50, 50)
        I(f"v_add_f32 v50, v50, v52")
        bf_round(50, 50)
        I(f"v_add_f32 v50, v50, v53")
        bf_round(50, 50)
        I(f"v_mul_f32 v{64+i}, v50, v{64+i}")
    I("v_lshlrev_b32 v2, 12, v1")
    I("s_lshl_b32 s23, s22, 6")
    for g in range(4):
        for j in range(4):
            I(f"v_cvt_pk_bf16_f32 v{100+j}, v{64+8*g+7-2*j}, v{64+8*g+6-2*j}")
        I(f"s_sub_u32 s44, {4080-16*g}, s23")
        I(f"buffer_store_dwordx4 v[100:103], v2, s[36:39], s44 offen")
        I("s_nop 1")
    I("s_endpgm")
    e("K1_WT:")
    I("s_sub_u32 s20, s20, 2560")
    srd(24, 12, 13, D*F*2)
    srd(28, 14, 15, D*F*2)
    srd(32, 16, 17, D*F*2)
    srd_off(36, 18, 19, WS_WGU, (WS_H-WS_WGU))
    I("v_and_b32 v1, 15, v63")
    I("v_lshrrev_b32 v2, 4, v63")
    I("v_lshlrev_b32 v3, 4, v63")
    I("s_movk_i32 s45, 0x5600")
    I("v_mul_u32_u24 v4, s45, v2")
    I("v_lshl_add_u32 v4, v1, 1, v4")
    I("v_lshlrev_b32 v5, 13, v2")
    I("v_lshl_add_u32 v5, v1, 1, v5")
    I("s_lshl_b32 s46, s20, 2")
    I("s_mov_b32 s47, 0")
    e("K1_WT_LOOP:")
    I("s_cmp_ge_u32 s46, 2752")
    I("s_cbranch_scc1 K1_WT_DOWN")
    I("s_cmp_ge_u32 s46, 1376")
    I("s_cselect_b32 s48, 1, 0")
    I("s_mul_i32 s49, s48, 1376")
    I("s_sub_u32 s49, s46, s49")
    I("s_lshr_b32 s50, s49, 4")
    I("s_and_b32 s51, s49, 15")
    I("s_mul_i32 s52, s51, 88064")
    I("s_lshl_b32 s53, s50, 5")
    I("s_add_u32 s52, s52, s53")
    I("s_mul_i32 s53, s48, 88")
    I("s_add_u32 s53, s53, s50")
    I("s_lshl_b32 s53, s53, 4")
    I("s_add_u32 s53, s53, s51")
    I("s_lshl_b32 s53, s53, 10")
    I("s_cmp_eq_u32 s48, 1")
    I("s_cbranch_scc1 K1_WT_UP")
    for i in range(8):
        I(f"buffer_load_ushort v{10+i}, v4, s[24:27], s52 offen")
        if i < 7: I("s_add_u32 s52, s52, 2752")
    I("s_branch K1_WT_PACK")
    e("K1_WT_UP:")
    for i in range(8):
        I(f"buffer_load_ushort v{10+i}, v4, s[28:31], s52 offen")
        if i < 7: I("s_add_u32 s52, s52, 2752")
    I("s_branch K1_WT_PACK")
    e("K1_WT_DOWN:")
    I("s_sub_u32 s49, s46, 2752")
    I("s_cmp_ge_u32 s49, 1376")
    I("s_cbranch_scc1 K1_WT_END")
    I("s_mul_hi_u32 s50, s49, 99882961")
    I("s_mul_i32 s51, s50, 43")
    I("s_sub_u32 s51, s49, s51")
    I("s_lshl_b32 s52, s51, 15")
    I("s_lshl_b32 s53, s50, 5")
    I("s_add_u32 s52, s52, s53")
    I("s_lshl_b32 s53, s49, 10")
    I(f"s_add_u32 s53, s53, {WS_WD-WS_WGU}")
    for i in range(8):
        I(f"buffer_load_ushort v{10+i}, v5, s[32:35], s52 offen")
        if i < 7: I("s_add_u32 s52, s52, 1024")
    e("K1_WT_PACK:")
    I("s_waitcnt vmcnt(0)")
    for i in range(4):
        I(f"v_lshl_or_b32 v{20+i}, v{11+2*i}, 16, v{10+2*i}")
    I("buffer_store_dwordx4 v[20:23], v3, s[36:39], s53 offen")
    I("s_nop 1")
    I("s_add_u32 s46, s46, 1")
    I("s_add_u32 s47, s47, 1")
    I("s_cmp_lt_u32 s47, 4")
    I("s_cbranch_scc1 K1_WT_LOOP")
    e("K1_WT_END:")
    I("s_endpgm")
    kdesc(name, 104)


NG1 = 352
def gemm1_part():
    e("K2_GEMM:")
    srd_off(8, 4, 5, WS_WGU, 2*NFT*16*1024)
    srd_off(12, 4, 5, WS_XN, 128*16*1024)
    srd_off(16, 4, 5, WS_H, 128*KS2*1024)
    I("s_mul_hi_u32 s21, s2, 195225787")
    I("s_mul_i32 s20, s21, 22")
    I("s_sub_u32 s20, s2, s20")
    I("s_lshr_b32 s22, s30, 1")
    I("s_and_b32 s23, s30, 1")
    I("s_mul_i32 s24, s22, 88")
    I("s_lshl_b32 s25, s20, 2")
    I("s_add_u32 s24, s24, s25")
    I("s_lshl_b32 s25, s23, 1")
    I("s_add_u32 s24, s24, s25")
    I("s_lshl_b32 s24, s24, 14")
    I("s_lshl_b32 s25, s21, 3")
    I("s_lshl_b32 s26, s30, 1")
    I("s_add_u32 s25, s25, s26")
    I("s_lshl_b32 s25, s25, 14")
    I("v_lshlrev_b32 v1, 4, v63")
    I("v_add_u32 v2, 0x4000, v1")
    I("s_lshl_b32 s26, s30, 12")
    I("v_add_u32 v3, s26, v1")
    I("s_lshl_b32 s26, s23, 12")
    I("v_add_u32 v4, s26, v1")
    I("s_lshl_b32 s26, s22, 13")
    I("s_add_u32 s26, s26, 16384")
    I("v_add_u32 v5, s26, v1")
    for i in range(64):
        I(f"v_mov_b32 v{64+i}, 0")
    ST = 160
    def gload():
        I(f"buffer_load_dwordx4 v[{ST}:{ST+3}], v1, s[8:11], s24 offen")
        I(f"buffer_load_dwordx4 v[{ST+4}:{ST+7}], v1, s[8:11], s24 offen offset:1024")
        I(f"buffer_load_dwordx4 v[{ST+8}:{ST+11}], v2, s[8:11], s24 offen")
        I(f"buffer_load_dwordx4 v[{ST+12}:{ST+15}], v2, s[8:11], s24 offen offset:1024")
        I(f"buffer_load_dwordx4 v[{ST+16}:{ST+19}], v1, s[12:15], s25 offen")
        I(f"buffer_load_dwordx4 v[{ST+20}:{ST+23}], v1, s[12:15], s25 offen offset:1024")
        I(f"buffer_load_dwordx4 v[{ST+24}:{ST+27}], v2, s[12:15], s25 offen")
        I(f"buffer_load_dwordx4 v[{ST+28}:{ST+31}], v2, s[12:15], s25 offen offset:1024")
        I("s_add_u32 s24, s24, 2048")
        I("s_add_u32 s25, s25, 2048")
    def lwrite(p):
        b = p*32768
        for i in range(4):
            I(f"ds_write_b128 v3, v[{ST+4*i}:{ST+4*i+3}] offset:{b + i*1024}")
        for i in range(4):
            I(f"ds_write_b128 v3, v[{ST+16+4*i}:{ST+16+4*i+3}] offset:{b + 16384 + i*1024}")
    FA = [128, 144]
    FR = [128, 192]
    def fread(p, ks, st):
        b = p*32768 + ks*1024
        offsA = [0, 2048, 8192, 10240]
        for a in range(4):
            I(f"ds_read_b128 v[{FR[st]+4*a}:{FR[st]+4*a+3}], v4 offset:{b+offsA[a]}")
        for bb in range(4):
            I(f"ds_read_b128 v[{FR[st]+16+4*bb}:{FR[st]+16+4*bb+3}], v5 offset:{b+bb*2048}")
    def mfmas(st):
        for bb in range(4):
            for a in range(4):
                acc = 64 + (a*4+bb)*4
                I(f"v_mfma_f32_16x16x32_bf16 v[{acc}:{acc+3}], v[{FR[st]+4*a}:{FR[st]+4*a+3}], v[{FR[st]+16+4*bb}:{FR[st]+16+4*bb+3}], v[{acc}:{acc+3}]")
    gload()
    I("s_waitcnt vmcnt(0)")
    lwrite(0)
    gload()
    I("s_waitcnt lgkmcnt(0)")
    I("s_barrier")
    I("s_mov_b32 s27, 0")
    e("K2_G_LOOP:")
    for p in range(2):
        fread(p, 0, 0)
        I("s_waitcnt lgkmcnt(0)")
        fread(p, 1, 1)
        mfmas(0)
        I("s_waitcnt vmcnt(0) lgkmcnt(0)")
        lwrite(1-p)
        I(f"s_cmp_ge_u32 s27, {6-p}")
        I(f"s_cbranch_scc1 K2_G_NOLD{p}")
        gload()
        e(f"K2_G_NOLD{p}:")
        mfmas(1)
        I("s_waitcnt lgkmcnt(0)")
        I("s_barrier")
    I("s_add_u32 s27, s27, 2")
    I("s_cmp_lt_u32 s27, 8")
    I("s_cbranch_scc1 K2_G_LOOP")
    I("s_lshl_b32 s26, s20, 1")
    I("s_add_u32 s26, s26, s23")
    I(f"s_cmp_ge_u32 s26, {KS2}")
    I("s_cbranch_scc1 K2_END")
    I("s_lshl_b32 s28, s21, 3")
    I("s_lshl_b32 s29, s22, 2")
    I("s_add_u32 s28, s28, s29")
    I(f"s_mul_i32 s28, s28, {KS2}")
    I("s_add_u32 s28, s28, s26")
    I("s_lshl_b32 s28, s28, 10")
    I("v_and_b32 v6, 15, v63")
    I("v_lshlrev_b32 v6, 4, v6")
    I("v_lshrrev_b32 v7, 5, v63")
    I("v_lshl_add_u32 v6, v7, 8, v6")
    I("v_bfe_u32 v7, v63, 4, 1")
    I("v_lshl_add_u32 v6, v7, 3, v6")
    I("s_nop 7")
    I("s_nop 7")
    for bb in range(4):
        for a in range(2):
            g = 64 + (a*4+bb)*4
            u = 64 + ((a+2)*4+bb)*4
            I(f"v_cvt_pk_bf16_f32 v8, v{g}, v{g+1}")
            I(f"v_cvt_pk_bf16_f32 v9, v{g+2}, v{g+3}")
            I(f"v_cvt_pk_bf16_f32 v18, v{u}, v{u+1}")
            I(f"v_cvt_pk_bf16_f32 v19, v{u+2}, v{u+3}")
            I("v_lshlrev_b32 v10, 16, v8")
            I("v_and_b32 v11, 0xffff0000, v8")
            I("v_lshlrev_b32 v12, 16, v9")
            I("v_and_b32 v13, 0xffff0000, v9")
            for r in range(4):
                I(f"v_mul_f32 v{14+r}, 0xbfb8aa3b, v{10+r}")
            for r in range(4):
                I(f"v_exp_f32 v{14+r}, v{14+r}")
            I("s_nop 0")
            for r in range(4):
                I(f"v_add_f32 v{14+r}, 1.0, v{14+r}")
            for r in range(4):
                I(f"v_rcp_f32 v{20+r}, v{14+r}")
            I("s_nop 0")
            for r in range(4):
                I(f"v_mul_f32 v24, v{10+r}, v{20+r}")
                I(f"v_fma_f32 v25, -v24, v{14+r}, v{10+r}")
                I(f"v_fma_f32 v{10+r}, v25, v{20+r}, v24")
            I("v_cvt_pk_bf16_f32 v8, v10, v11")
            I("v_cvt_pk_bf16_f32 v9, v12, v13")
            I("v_lshlrev_b32 v10, 16, v8")
            I("v_and_b32 v11, 0xffff0000, v8")
            I("v_lshlrev_b32 v12, 16, v9")
            I("v_and_b32 v13, 0xffff0000, v9")
            I("v_lshlrev_b32 v14, 16, v18")
            I("v_and_b32 v15, 0xffff0000, v18")
            I("v_lshlrev_b32 v16, 16, v19")
            I("v_and_b32 v17, 0xffff0000, v19")
            for r in range(4):
                I(f"v_mul_f32 v{10+r}, v{10+r}, v{14+r}")
            I("v_cvt_pk_bf16_f32 v26, v10, v11")
            I("v_cvt_pk_bf16_f32 v27, v12, v13")
            I(f"buffer_store_dwordx2 v[26:27], v6, s[16:19], s28 offen offset:{a*512}")
            I("s_nop 1")
        if bb < 3:
            I(f"s_add_u32 s28, s28, {KS2*1024}")
    e("K2_END:")
    I("s_endpgm")


CH_BYTES = 8*4352 + 5120
KVIMG = 8*4352
def conv_part():
    e("K2_CONV:")
    I(f"s_sub_u32 s20, s2, {NG1}")
    I("s_cmp_ge_u32 s20, 256")
    I("s_cbranch_scc1 K2_END")
    I("s_load_dwordx4 s[24:27], s[0:1], 32")
    I("s_lshr_b32 s21, s30, 1")
    I("s_lshl_b32 s22, s20, 1")
    I("s_add_u32 s22, s22, s21")
    I("s_and_b32 s23, s30, 1")
    I(f"s_mul_i32 s28, s21, {CH_BYTES}")
    I("s_lshl_b32 s29, s22, 12")
    I("s_waitcnt lgkmcnt(0)")
    I("s_add_u32 s8, s24, s29")
    I("s_addc_u32 s9, s25, 0")
    I("s_mov_b32 s10, 4096")
    I("s_mov_b32 s11, 0x00020000")
    I("s_add_u32 s12, s4, s29")
    I("s_addc_u32 s13, s5, 0")
    I(f"s_add_u32 s12, s12, {WS_KVR}")
    I("s_addc_u32 s13, s13, 0")
    I("s_mov_b32 s14, 4096")
    I("s_mov_b32 s15, 0x00020000")
    I("s_add_u32 s16, s4, s29")
    I("s_addc_u32 s17, s5, 0")
    I(f"s_add_u32 s16, s16, {WS_Y2T}")
    I("s_addc_u32 s17, s17, 0")
    I("s_mov_b32 s18, 4096")
    I("s_mov_b32 s19, 0x00020000")
    srd(36, 26, 27, 1024)
    I("s_lshl_b32 s31, s23, 6")
    I("v_add_u32 v1, s31, v63")
    I("v_lshlrev_b32 v2, 4, v1")
    for it in range(2):
        I(f"buffer_load_dwordx4 v[{100+4*it}:{103+4*it}], v2, s[12:15], 0 offen offset:{2048*it}")
    for it in range(2):
        for a in range(4):
            I(f"buffer_load_dwordx4 v[{110+20*it+4*a}:{113+20*it+4*a}], v2, s[8:11], 0 offen offset:{2048*it+4*a}")
        I(f"buffer_load_dword v{126+20*it}, v2, s[8:11], 0 offen offset:{2048*it+28}")
    I("v_mov_b32 v3, 0")
    I("buffer_load_dwordx4 v[150:153], v3, s[8:11], 0 offen")
    I("s_lshl_b32 s31, s22, 1")
    I("v_mov_b32 v3, s31")
    I("buffer_load_ushort v154, v3, s[36:39], 0 offen")
    def copybase(dst, r, tmp):
        I(f"v_add_u32 v{tmp}, 7, v{r}")
        I(f"v_and_b32 v{tmp}, 7, v{tmp}")
        I(f"v_lshrrev_b32 v{dst}, 1, v{tmp}")
        I(f"v_lshlrev_b32 v{dst}, 2, v{dst}")
        I(f"v_and_b32 v{tmp}, 1, v{tmp}")
        I(f"v_add_u32 v{dst}, v{dst}, v{tmp}")
        I(f"v_min_u32 v{dst}, 12, v{dst}")
        I(f"v_lshlrev_b32 v{dst}, 4, v{dst}")
        I(f"s_movk_i32 s31, 4352")
        I(f"v_mul_u32_u24 v{tmp}, s31, v{r}")
        I(f"v_add_u32 v{dst}, v{dst}, v{tmp}")
    for i in range(4):
        I(f"v_mov_b32 v{4+i}, 0")
    I("v_lshrrev_b32 v8, 2, v63")
    I("v_and_b32 v8, 7, v8")
    copybase(9, 8, 10)
    I("v_and_b32 v10, 3, v63")
    I("v_lshl_add_u32 v9, v10, 4, v9")
    I("v_add_u32 v9, s28, v9")
    I("s_cmp_lg_u32 s23, 0")
    I("s_cbranch_scc1 K2_C_NOZ")
    I("v_cmp_gt_u32 vcc, 32, v63")
    I("s_and_saveexec_b64 s[32:33], vcc")
    I("ds_write_b128 v9, v[4:7]")
    I("s_mov_b64 exec, s[32:33]")
    I("s_branch K2_C_Z2")
    e("K2_C_NOZ:")
    I("v_add_u32 v9, 256, v63")
    I("v_bfe_u32 v10, v9, 3, 2")
    I("v_xor_b32 v9, v9, v10")
    I("v_lshlrev_b32 v9, 4, v9")
    I(f"v_add_u32 v9, s28, v9")
    I(f"ds_write_b128 v9, v[4:7] offset:{KVIMG}")
    e("K2_C_Z2:")
    I("s_waitcnt vmcnt(0)")
    I("s_cmp_lg_u32 s23, 0")
    I("s_cbranch_scc1 K2_C_NOP")
    copybase(9, 63, 10)
    I("v_lshlrev_b32 v10, 1, v63")
    I("v_sub_u32 v9, v9, v10")
    I("v_add_u32 v9, 64, v9")
    I("v_add_u32 v9, s28, v9")
    I("v_cmp_gt_u32 vcc, 8, v63")
    I("s_and_saveexec_b64 s[32:33], vcc")
    I("ds_write_b128 v9, v[150:153]")
    I("s_mov_b64 exec, s[32:33]")
    e("K2_C_NOP:")
    CR = [12,0,1,4,5,8,9,12]
    for it in range(2):
        g = 110+20*it
        for a in range(4):
            for i in range(3):
                I(f"v_alignbyte_b32 v{160+4*a+i}, v{g+4*a+i+1}, v{g+4*a+i}, 2")
            nxt = g+4*(a+1)+3 if a < 3 else g+16
            I(f"v_alignbyte_b32 v{160+4*a+3}, v{nxt}, v{g+4*a+3}, 2")
        I("v_add_u32 v9, s28, v2")
        for a in range(4):
            r0 = 2*a; r1 = 2*a+1
            I(f"ds_write_b128 v9, v[{g+4*a}:{g+4*a+3}] offset:{r0*4352+16*CR[r0]+64+2048*it}")
            I(f"ds_write_b128 v9, v[{160+4*a}:{160+4*a+3}] offset:{r1*4352+16*CR[r1]+64+2048*it}")
    for it in range(2):
        I(f"v_add_u32 v9, {128*it}, v1")
        I("v_bfe_u32 v10, v9, 3, 2")
        I("v_xor_b32 v9, v9, v10")
        I("v_lshlrev_b32 v9, 4, v9")
        I("v_add_u32 v9, s28, v9")
        I(f"ds_write_b128 v9, v[{100+4*it}:{103+4*it}] offset:{KVIMG}")
    I("v_and_b32 v8, 15, v63")
    I("v_add_u32 v8, 1, v8")
    I("v_and_b32 v11, 7, v8")
    copybase(12, 11, 10)
    I("v_lshrrev_b32 v8, 3, v8")
    I("v_lshrrev_b32 v10, 4, v63")
    I("v_add_u32 v8, v8, v10")
    I("v_lshl_add_u32 v12, v8, 4, v12")
    I("v_add_u32 v12, s28, v12")
    I("v_and_b32 v8, 15, v63")
    I("v_lshlrev_b32 v8, 2, v8")
    I("v_sub_u32 v8, v10, v8")
    I("v_add_u32 v8, 252, v8")
    for sl in range(2):
        if sl == 0:
            I("s_lshl_b32 s31, s23, 6")
        else:
            I("s_sub_u32 s31, 3, s23")
            I("s_lshl_b32 s31, s31, 6")
        I(f"v_subrev_u32 v9, s31, v8")
        for t in range(8):
            I(f"v_add_u32 v10, {4*t}, v9")
            I("v_bfe_u32 v11, v10, 3, 2")
            I("v_xor_b32 v10, v10, v11")
            I(f"v_lshlrev_b32 v{16+8*sl+t}, 4, v10")
            I(f"v_add_u32 v{16+8*sl+t}, s28, v{16+8*sl+t}")
    for i in range(16):
        I(f"v_mov_b32 v{64+i}, 0")
    I("s_waitcnt lgkmcnt(0)")
    I("s_barrier")
    FS = [32, 96]
    def rd(t, st, both):
        I(f"ds_read_b128 v[{FS[st]}:{FS[st]+3}], v12 offset:{64*t}")
        I(f"ds_read_b128 v[{FS[st]+4}:{FS[st]+7}], v12 offset:{64*t+32}")
        if both:
            I(f"ds_read_b128 v[{FS[st]+8}:{FS[st]+11}], v{16+(t&7)} offset:{KVIMG+512*(t>>3)}")
        I(f"ds_read_b128 v[{FS[st]+12}:{FS[st]+15}], v{24+(t&7)} offset:{KVIMG+512*(t>>3)}")
    def mm(st, both):
        f = FS[st]
        if both:
            I(f"v_mfma_f32_16x16x32_bf16 v[64:67], v[{f}:{f+3}], v[{f+8}:{f+11}], v[64:67]")
            I(f"v_mfma_f32_16x16x32_bf16 v[68:71], v[{f+4}:{f+7}], v[{f+8}:{f+11}], v[68:71]")
        I(f"v_mfma_f32_16x16x32_bf16 v[72:75], v[{f}:{f+3}], v[{f+12}:{f+15}], v[72:75]")
        I(f"v_mfma_f32_16x16x32_bf16 v[76:79], v[{f+4}:{f+7}], v[{f+12}:{f+15}], v[76:79]")
    def macro(both):
        rd(0, 0, both)
        for t in range(16):
            if t < 15:
                rd(t+1, (t+1)&1, both)
                I(f"s_waitcnt lgkmcnt({4 if both else 3})")
            else:
                I("s_waitcnt lgkmcnt(0)")
            mm(t&1, both)
        I("v_add_u32 v12, 1024, v12")
        for i in range(16):
            I(f"v_add_u32 v{16+i}, 1024, v{16+i}")
    I("s_add_u32 s34, s23, 1")
    e("K2_C_L1:")
    macro(True)
    I("s_sub_u32 s34, s34, 1")
    I("s_cmp_gt_u32 s34, 0")
    I("s_cbranch_scc1 K2_C_L1")
    I("s_lshl_b32 s34, s23, 1")
    I("s_sub_u32 s34, 3, s34")
    e("K2_C_L2:")
    macro(False)
    I("s_sub_u32 s34, s34, 1")
    I("s_cmp_gt_u32 s34, 0")
    I("s_cbranch_scc1 K2_C_L2")
    I("v_lshlrev_b32 v154, 16, v154")
    I("v_and_b32 v8, 15, v63")
    I("v_lshrrev_b32 v10, 4, v63")
    I("s_nop 7")
    for sl in range(2):
        for m in range(2):
            acc = 64 + (sl*2+m)*4
            if sl == 0:
                I("s_lshl_b32 s31, s23, 9")
            else:
                I("s_sub_u32 s31, 3, s23")
                I("s_lshl_b32 s31, s31, 9")
            I(f"v_lshlrev_b32 v9, 5, v8")
            I(f"v_lshl_add_u32 v9, v10, 2, v9")
            I(f"v_add_u32 v9, s31, v9")
            if m: I("v_add_u32 v9, 16, v9")
            I("v_sub_u32 v11, 2044, v9")
            I("v_lshrrev_b32 v13, 3, v11")
            I("v_bfe_u32 v14, v13, 3, 2")
            I("v_xor_b32 v13, v13, v14")
            I("v_lshlrev_b32 v13, 4, v13")
            I("v_and_b32 v14, 4, v11")
            I("v_lshl_add_u32 v13, v14, 1, v13")
            I("v_add_u32 v13, s28, v13")
            I(f"ds_read_b64 v[14:15], v13 offset:{KVIMG}")
            I("s_waitcnt lgkmcnt(0)")
            I("v_lshlrev_b32 v83, 16, v14")
            I("v_and_b32 v82, 0xffff0000, v14")
            I("v_lshlrev_b32 v81, 16, v15")
            I("v_and_b32 v80, 0xffff0000, v15")
            for r in range(4):
                I(f"v_mul_f32 v{80+r}, v{80+r}, v154")
                bf_round(80+r, 80+r)
                bf_round(84, acc+r)
                I(f"v_add_f32 v{80+r}, v{80+r}, v84")
            I("v_cvt_pk_bf16_f32 v86, v80, v81")
            I("v_cvt_pk_bf16_f32 v87, v82, v83")
            I("v_lshlrev_b32 v9, 1, v9")
            I("buffer_store_dwordx2 v[86:87], v9, s[16:19], 0 offen")
            I("s_nop 1")
    I("s_endpgm")

def k2():
    name = "k2_gemm1_kernel"
    kstart(name)
    I("s_load_dwordx2 s[4:5], s[0:1], 96")
    I("v_lshrrev_b32 v1, 6, v0")
    I("v_and_b32 v63, 63, v0")
    I("s_nop 0")
    I("v_readfirstlane_b32 s30, v1")
    I("s_waitcnt lgkmcnt(0)")
    I(f"s_cmp_lt_u32 s2, {NG1}")
    I("s_cbranch_scc1 K2_GEMM")
    conv_part()
    gemm1_part()
    kdesc(name, 224)

def k3():
    name = "k3_gemm2_kernel"
    kstart(name)
    I("s_load_dwordx2 s[4:5], s[0:1], 96")
    I("s_load_dwordx2 s[6:7], s[0:1], 0")
    I("s_load_dwordx2 s[34:35], s[0:1], 80")
    I("v_lshrrev_b32 v1, 6, v0")
    I("v_and_b32 v63, 63, v0")
    I("s_nop 0")
    I("v_readfirstlane_b32 s30, v1")
    I("s_waitcnt lgkmcnt(0)")
    I("s_cmp_ge_u32 s2, 256")
    I("s_cbranch_scc1 K3_END")
    srd_off(8, 4, 5, WS_WD, 32*KS2*1024)
    srd_off(12, 4, 5, WS_H, 128*KS2*1024)
    I("s_and_b32 s20, s2, 7")
    I("s_lshr_b32 s21, s2, 3")
    I(f"s_mul_i32 s24, s20, {4*KS2}")
    I("s_add_u32 s24, s24, s30")
    I("s_lshl_b32 s24, s24, 10")
    I(f"s_mul_i32 s25, s21, {4*KS2}")
    I("s_add_u32 s25, s25, s30")
    I("s_lshl_b32 s25, s25, 10")
    I("v_lshlrev_b32 v1, 4, v63")
    for a in range(1,4):
        I(f"v_add_u32 v{1+a}, {a*KS2*1024}, v1")
    for i in range(64):
        I(f"v_mov_b32 v{64+i}, 0")
    FR = [128, 160, 192]
    def ld(st):
        for a in range(4):
            I(f"buffer_load_dwordx4 v[{FR[st]+4*a}:{FR[st]+4*a+3}], v{1+a}, s[8:11], s24 offen")
        for a in range(4):
            I(f"buffer_load_dwordx4 v[{FR[st]+16+4*a}:{FR[st]+16+4*a+3}], v{1+a}, s[12:15], s25 offen")
        I("s_add_u32 s24, s24, 4096")
        I("s_add_u32 s25, s25, 4096")
    def mf(st):
        for bb in range(4):
            for a in range(4):
                acc = 64 + (a*4+bb)*4
                I(f"v_mfma_f32_16x16x32_bf16 v[{acc}:{acc+3}], v[{FR[st]+4*a}:{FR[st]+4*a+3}], v[{FR[st]+16+4*bb}:{FR[st]+16+4*bb+3}], v[{acc}:{acc+3}]")
    I("s_cmp_lt_u32 s30, 3")
    I("s_cselect_b32 s26, 11, 10")
    ld(0)
    ld(1)
    I("s_mov_b32 s27, 0")
    e("K3_LOOP:")
    for st in range(3):
        I("s_add_u32 s28, s27, 2")
        I("s_cmp_lt_u32 s28, s26")
        I(f"s_cbranch_scc0 K3_NOLD{st}")
        ld((st+2)%3)
        I("s_waitcnt vmcnt(16)")
        I(f"s_branch K3_GO{st}")
        e(f"K3_NOLD{st}:")
        I("s_waitcnt vmcnt(0)")
        e(f"K3_GO{st}:")
        mf(st)
        I("s_add_u32 s27, s27, 1")
        I("s_cmp_ge_u32 s27, s26")
        I("s_cbranch_scc1 K3_DONE")
    I("s_branch K3_LOOP")
    e("K3_DONE:")
    I("s_lshl_b32 s26, s30, 14")
    I("v_add_u32 v5, s26, v1")
    I("s_nop 7")
    I("s_nop 7")
    for t in range(16):
        I(f"ds_write_b128 v5, v[{64+4*t}:{64+4*t+3}] offset:{t*1024}")
    I("s_waitcnt lgkmcnt(0)")
    I("s_barrier")
    I("s_lshl_b32 s26, s30, 12")
    I("v_add_u32 v5, s26, v1")
    for bb in range(4):
        for ww in range(4):
            I(f"ds_read_b128 v[{128+16*bb+4*ww}:{128+16*bb+4*ww+3}], v5 offset:{ww*16384 + bb*1024}")
    I("s_waitcnt lgkmcnt(0)")
    for bb in range(4):
        for r in range(4):
            b0 = 128+16*bb+r
            I(f"v_add_f32 v{b0}, v{b0}, v{b0+4}")
            I(f"v_add_f32 v{b0+8}, v{b0+8}, v{b0+12}")
            I(f"v_add_f32 v{64+4*bb+r}, v{b0}, v{b0+8}")
    srd(16, 6, 7, S*D*2)
    srd_off(36, 4, 5, WS_XN, 128*16*1024)
    srd_off(40, 4, 5, WS_Y2T, 512*4096)
    srd(44, 34, 35, S*D*2)
    I("v_and_b32 v6, 15, v63")
    I("v_lshrrev_b32 v7, 4, v63")
    I("v_lshlrev_b32 v8, 10, v6")
    I("v_lshl_add_u32 v8, v7, 3, v8")
    I("s_lshl_b32 s24, s21, 16")
    I("s_lshl_b32 s25, s20, 7")
    I("s_add_u32 s24, s24, s25")
    I("s_lshl_b32 s25, s30, 5")
    I("s_add_u32 s24, s24, s25")
    I("v_lshlrev_b32 v9, 4, v6")
    I("v_lshrrev_b32 v10, 1, v7")
    I("v_lshl_add_u32 v9, v10, 8, v9")
    I("v_and_b32 v10, 1, v7")
    I("v_lshl_add_u32 v9, v10, 3, v9")
    I("s_lshl_b32 s25, s21, 6")
    I("s_lshl_b32 s26, s20, 1")
    I("s_add_u32 s25, s25, s26")
    I("s_lshr_b32 s26, s30, 1")
    I("s_add_u32 s25, s25, s26")
    I("s_lshl_b32 s25, s25, 10")
    I("s_and_b32 s26, s30, 1")
    I("s_lshl_b32 s26, s26, 9")
    I("s_add_u32 s25, s25, s26")
    I("v_lshlrev_b32 v11, 14, v7")
    I("v_lshl_add_u32 v11, v6, 1, v11")
    I("s_lshl_b32 s26, s20, 18")
    I("s_lshl_b32 s27, s30, 16")
    I("s_add_u32 s26, s26, s27")
    I("s_lshl_b32 s27, s21, 7")
    I("s_add_u32 s26, s26, s27")
    for bb in range(4):
        I(f"buffer_load_dwordx2 v[12:13], v8, s[16:19], s24 offen")
        I(f"buffer_load_dwordx2 v[14:15], v9, s[36:39], s25 offen")
        I(f"buffer_load_ushort v16, v11, s[40:43], s26 offen")
        I(f"s_add_u32 s27, s26, 4096")
        I(f"buffer_load_ushort v17, v11, s[40:43], s27 offen")
        I(f"s_add_u32 s27, s26, 8192")
        I(f"buffer_load_ushort v18, v11, s[40:43], s27 offen")
        I(f"s_add_u32 s27, s26, 12288")
        I(f"buffer_load_ushort v19, v11, s[40:43], s27 offen")
        I("s_waitcnt vmcnt(0)")
        I("v_lshlrev_b32 v20, 16, v12")
        I("v_and_b32 v21, 0xffff0000, v12")
        I("v_lshlrev_b32 v22, 16, v13")
        I("v_and_b32 v23, 0xffff0000, v13")
        I("v_lshlrev_b32 v24, 16, v14")
        I("v_and_b32 v25, 0xffff0000, v14")
        I("v_lshlrev_b32 v26, 16, v15")
        I("v_and_b32 v27, 0xffff0000, v15")
        for r in range(4):
            I(f"v_lshlrev_b32 v{16+r}, 16, v{16+r}")
            I(f"v_mul_f32 v{16+r}, v{24+r}, v{16+r}")
            bf_round(16+r, 16+r)
            I(f"v_add_f32 v{16+r}, v{20+r}, v{16+r}")
            bf_round(16+r, 16+r)
            bf_round(28, 64+4*bb+r)
            I(f"v_add_f32 v{16+r}, v{16+r}, v28")
        I("v_cvt_pk_bf16_f32 v30, v16, v17")
        I("v_cvt_pk_bf16_f32 v31, v18, v19")
        I(f"buffer_store_dwordx2 v[30:31], v8, s[44:47], s24 offen")
        I("s_nop 1")
        if bb < 3:
            I("s_add_u32 s24, s24, 16384")
            I("s_add_u32 s25, s25, 16384")
            I("s_add_u32 s26, s26, 32")
    e("K3_END:")
    I("s_endpgm")
    kdesc(name, 224)

LAUNCH = []
def main():
    global LAUNCH
    which = sys.argv[1] if len(sys.argv) > 1 else "all"
    LAUNCH = ["; @launch kernel=k1_prep_kernel grid=(898,1,1) block=(256,1,1) lds=0",
              "; @launch kernel=k2_gemm1_kernel grid=(608,1,1) block=(256,1,1) lds=79872",
              "; @launch kernel=k3_gemm2_kernel grid=(256,1,1) block=(256,1,1) lds=65536"]
    header()
    k1()
    k2()
    k3()
    open(sys.argv[2] if len(sys.argv) > 2 else "out.s", "w").write("\n".join(out) + "\n")

if __name__ == "__main__":
    main()
```

```python
import sys

S = 2048; D = 512; F = 1376
NFT = 88
KS1 = 16
KS2 = 43
WS_XN  = 0
WS_WGU = WS_XN + 128*16*1024
WS_WD  = WS_WGU + 2*NFT*16*1024
WS_H   = WS_WD + 32*KS2*1024
WS_KVR = WS_H + 128*KS2*1024
WS_Y2T = WS_KVR + 512*4096
WS_END = WS_Y2T + 512*4096

out = []
def e(s=""): out.append(s)
def I(s): out.append("    " + s)

def header():
    e("""; Kernarg layout for this problem (104 bytes, ptrs only, base s[0:1]):
;   offset  96: d_ws      268435456 bytes workspace""")
    for l in LAUNCH: e(l)
    e('.amdgcn_target "amdgcn-amd-amdhsa--gfx950"')
    e('.text')

def kstart(name):
    e(f".globl {name}")
    e(".p2align 8")
    e(f".type {name},@function")
    e(f"{name}:")

def kdesc(name, vgpr, sgpr=96, accum=None, extra=""):
    acc = accum if accum is not None else ((vgpr + 3)//4)*4
    e('.section .rodata,"a"')
    e('.p2align 6')
    e(f".amdhsa_kernel {name}")
    e(f"  .amdhsa_next_free_vgpr {vgpr}")
    e(f"  .amdhsa_next_free_sgpr {sgpr}")
    e(f"  .amdhsa_accum_offset {acc}")
    e("  .amdhsa_group_segment_fixed_size 0")
    e("  .amdhsa_kernarg_size 104")
    e("  .amdhsa_user_sgpr_count 2")
    e("  .amdhsa_user_sgpr_kernarg_segment_ptr 1")
    e("  .amdhsa_system_sgpr_workgroup_id_x 1")
    e(".end_amdhsa_kernel")
    e(".text")

def srd(s, base_lo, base_hi, size):
    I(f"s_mov_b32 s{s}, s{base_lo}")
    I(f"s_mov_b32 s{s+1}, s{base_hi}")
    I(f"s_mov_b32 s{s+2}, {size}")
    I(f"s_mov_b32 s{s+3}, 0x00020000")

def srd_off(s, base_lo, base_hi, off, size):
    I(f"s_add_u32 s{s}, s{base_lo}, {off}")
    I(f"s_addc_u32 s{s+1}, s{base_hi}, 0")
    I(f"s_mov_b32 s{s+2}, {size}")
    I(f"s_mov_b32 s{s+3}, 0x00020000")


STAMPS = False
WS_STAMP = (WS_END + 4095)//4096*4096
def stamp_init(wavereg_s, vtmp, wsp=4):
    if not STAMPS: return
    srd_off(84, wsp, wsp+1, WS_STAMP, 1<<22)
    I("s_lshl_b32 s92, s2, 2")
    I(f"s_add_u32 s92, s92, s{wavereg_s}")
    I("s_lshl_b32 s92, s92, 6")
    I(f"v_mov_b32 v{vtmp}, s92")
def stamp(idx, vtmp):
    if not STAMPS: return
    I("s_memrealtime s[90:91]")
    I("s_waitcnt lgkmcnt(0)")
    I(f"v_mov_b32 v{vtmp+1}, s90")
    I(f"buffer_store_dword v{vtmp+1}, v{vtmp}, s[84:87], 0 offen offset:{idx*4}")

def wave_row_sum(v, t):
    I("s_nop 1")
    I(f"v_add_f32_dpp v{v}, v{v}, v{v} quad_perm:[1,0,3,2] row_mask:0xf bank_mask:0xf")
    I("s_nop 1")
    I(f"v_add_f32_dpp v{v}, v{v}, v{v} quad_perm:[2,3,0,1] row_mask:0xf bank_mask:0xf")
    I("s_nop 1")
    I(f"v_add_f32_dpp v{v}, v{v}, v{v} row_half_mirror row_mask:0xf bank_mask:0xf")
    I("s_nop 1")
    I(f"v_add_f32_dpp v{v}, v{v}, v{v} row_mirror row_mask:0xf bank_mask:0xf")
    I("s_nop 1")
    I(f"v_readlane_b32 s40, v{v}, 0")
    I(f"v_readlane_b32 s41, v{v}, 16")
    I(f"v_readlane_b32 s42, v{v}, 32")
    I(f"v_readlane_b32 s43, v{v}, 48")
    I("s_nop 1")
    I(f"v_mov_b32 v{t}, s40")
    I(f"v_add_f32 v{t}, s41, v{t}")
    I(f"v_add_f32 v{t}, s42, v{t}")
    I(f"v_add_f32 v{v}, s43, v{t}")

def bf_round(dst, src):
    I(f"v_cvt_pk_bf16_f32 v{dst}, v{src}, v{src}")
    I(f"v_lshlrev_b32 v{dst}, 16, v{dst}")

def k1():
    name = "k1_prep_kernel"
    kstart(name)
    I("s_load_dwordx4 s[4:7], s[0:1], 0")
    I("s_load_dwordx4 s[8:11], s[0:1], 16")
    I("s_load_dwordx4 s[12:15], s[0:1], 56")
    I("s_load_dwordx2 s[16:17], s[0:1], 72")
    I("s_load_dwordx2 s[18:19], s[0:1], 96")
    I("v_lshrrev_b32 v1, 6, v0")
    I("v_and_b32 v63, 63, v0")
    I("s_nop 0")
    I("v_readfirstlane_b32 s20, v1")
    I("s_lshl_b32 s21, s2, 2")
    I("s_add_u32 s20, s20, s21")
    I("s_waitcnt lgkmcnt(0)")
    if K1STAMP:
        I("v_readfirstlane_b32 s30, v1")
        stamp_init(30, 110, 18); stamp(0, 110)
    I("s_cmp_lt_u32 s20, 2048")
    I("s_cbranch_scc1 K1_LN")
    I(f"s_cmp_lt_u32 s20, {3072+1048}")
    I("s_cbranch_scc1 K1_KV")
    I("s_endpgm")
    e("K1_LN:")
    srd(24, 4, 5, S*D*2)
    srd_off(28, 18, 19, WS_XN, 128*16*1024)
    I("s_lshl_b32 s22, s20, 10")
    I("v_lshlrev_b32 v1, 4, v63")
    I("buffer_load_dwordx4 v[4:7], v1, s[24:27], s22 offen")
    I("s_waitcnt vmcnt(0)")
    for i in range(4):
        I(f"v_lshlrev_b32 v{8+2*i}, 16, v{4+i}")
        I(f"v_and_b32 v{9+2*i}, 0xffff0000, v{4+i}")
    I("v_add_f32 v16, v8, v9")
    for i in range(2,8):
        I(f"v_add_f32 v16, v16, v{8+i}")
    wave_row_sum(16, 17)
    I("v_mul_f32 v16, 0x3b000000, v16")
    I("v_sub_f32 v18, v8, v16")
    I("v_mul_f32 v19, v18, v18")
    for i in range(1,8):
        I(f"v_sub_f32 v18, v{8+i}, v16")
        I(f"v_fmac_f32 v19, v18, v18")
    wave_row_sum(19, 17)
    I("v_mul_f32 v19, 0x3b000000, v19")
    bf_round(19, 19)
    I("v_add_f32 v19, 0x3727c5ac, v19")
    bf_round(19, 19)
    I("v_sqrt_f32 v19, v19")
    I("s_nop 0")
    bf_round(19, 19)
    bf_round(16, 16)
    I("v_rcp_f32 v20, v19")
    for i in range(8):
        I(f"v_sub_f32 v{8+i}, v{8+i}, v16")
    for i in range(4):
        I(f"v_cvt_pk_bf16_f32 v{4+i}, v{8+2*i}, v{9+2*i}")
    for i in range(4):
        I(f"v_lshlrev_b32 v{8+2*i}, 16, v{4+i}")
        I(f"v_and_b32 v{9+2*i}, 0xffff0000, v{4+i}")
    for i in range(8):
        I(f"v_mul_f32 v21, v{8+i}, v20")
        I(f"v_fma_f32 v22, -v21, v19, v{8+i}")
        I(f"v_fma_f32 v{8+i}, v22, v20, v21")
    for i in range(4):
        I(f"v_cvt_pk_bf16_f32 v{4+i}, v{8+2*i}, v{9+2*i}")
    I("s_lshr_b32 s23, s20, 4")
    I("s_lshl_b32 s23, s23, 14")
    I("s_and_b32 s22, s20, 15")
    I("s_lshl_b32 s22, s22, 4")
    I("s_add_u32 s23, s23, s22")
    I("v_lshrrev_b32 v1, 2, v63")
    I("v_lshlrev_b32 v1, 10, v1")
    I("v_and_b32 v2, 3, v63")
    I("v_lshlrev_b32 v2, 8, v2")
    I("v_add_u32 v1, v1, v2")
    I("buffer_store_dwordx4 v[4:7], v1, s[28:31], s23 offen")
    if K1STAMP: stamp(3, 110)
    I("s_endpgm")
    e("K1_KV:")
    I(f"s_cmp_ge_u32 s20, {2048+1024}")
    I("s_cbranch_scc1 K1_WT")
    I("s_sub_u32 s20, s20, 2048")
    srd(24, 6, 7, S*D*2)
    srd(28, 8, 9, S*D*2)
    srd(32, 10, 11, D*4*2)
    srd_off(36, 18, 19, WS_KVR, 512*4096)
    I("s_and_b32 s21, s20, 7")
    I("s_lshr_b32 s22, s20, 3")
    I("s_lshl_b32 s21, s21, 6")
    I("v_and_b32 v1, 31, v63")
    I("v_lshl_add_u32 v1, v1, 1, s21")
    I("v_lshlrev_b32 v2, 3, v1")
    I("buffer_load_dwordx4 v[4:7], v2, s[32:35], 0 offen")
    I("v_lshrrev_b32 v3, 5, v63")
    I("s_lshl_b32 s23, s22, 4")
    I("v_lshl_add_u32 v3, v3, 3, s23")
    I("v_lshlrev_b32 v2, 10, v3")
    I("v_lshl_add_u32 v2, v1, 1, v2")
    for i in range(8):
        I(f"buffer_load_dword v{13+i}, v2, s[24:27], 0 offen offset:{(i%4)*1024}" if i < 4 else
          f"buffer_load_dword v{13+i}, v8, s[24:27], 0 offen offset:{(i%4)*1024}")
        if i == 3: I("v_add_u32 v8, 4096, v2")
    for i in range(8):
        I(f"buffer_load_dword v{64+i}, v{2 if i < 4 else 8}, s[28:31], 0 offen offset:{(i%4)*1024}")
    I("v_cmp_eq_u32 vcc, 0, v3")
    I("v_subrev_u32 v9, 3072, v2")
    I("v_cndmask_b32 v9, v9, v2, vcc")
    for i in range(3):
        I(f"buffer_load_dword v{10+i}, v9, s[24:27], 0 offen offset:{i*1024}")
    I("s_waitcnt vmcnt(0)")
    for i in range(3):
        I(f"v_cndmask_b32 v{10+i}, v{10+i}, 0, vcc")
    for half in range(2):
        wa, wb = (4, 5) if half == 0 else (6, 7)
        I(f"v_lshlrev_b32 v40, 16, v{wa}")
        I(f"v_and_b32 v41, 0xffff0000, v{wa}")
        I(f"v_lshlrev_b32 v42, 16, v{wb}")
        I(f"v_and_b32 v43, 0xffff0000, v{wb}")
        for i in range(11):
            if half == 0: I(f"v_lshlrev_b32 v{24+i}, 16, v{10+i}")
            else: I(f"v_and_b32 v{24+i}, 0xffff0000, v{10+i}")
        for i in range(8):
            if half == 0: I(f"v_lshlrev_b32 v{80+i}, 16, v{64+i}")
            else: I(f"v_and_b32 v{80+i}, 0xffff0000, v{64+i}")
        for i in range(8):
            I(f"v_mul_f32 v50, v{24+i}, v43")
            I(f"v_mul_f32 v51, v{25+i}, v42")
            I(f"v_mul_f32 v52, v{26+i}, v41")
            I(f"v_mul_f32 v53, v{27+i}, v40")
            I(f"v_cvt_pk_bf16_f32 v50, v50, v51")
            I(f"v_cvt_pk_bf16_f32 v52, v52, v53")
            I(f"v_and_b32 v51, 0xffff0000, v50")
            I(f"v_lshlrev_b32 v50, 16, v50")
            I(f"v_and_b32 v53, 0xffff0000, v52")
            I(f"v_lshlrev_b32 v52, 16, v52")
            I(f"v_add_f32 v50, v50, v51")
            bf_round(50, 50)
            I(f"v_add_f32 v50, v50, v52")
            bf_round(50, 50)
            I(f"v_add_f32 v50, v50, v53")
            bf_round(50, 50)
            I(f"v_mul_f32 v{80+i}, v50, v{80+i}")
        for j in range(4):
            I(f"v_cvt_pk_bf16_f32 v{100+4*half+j}, v{80+7-2*j}, v{80+6-2*j}")
    I("v_lshlrev_b32 v2, 12, v1")
    I("v_lshlrev_b32 v3, 1, v3")
    I("v_sub_u32 v2, v2, v3")
    I("v_add_u32 v2, 4080, v2")
    I("buffer_store_dwordx4 v[100:103], v2, s[36:39], 0 offen")
    I("v_add_u32 v2, 4096, v2")
    I("buffer_store_dwordx4 v[104:107], v2, s[36:39], 0 offen")
    if K1STAMP: stamp(3, 110)
    I("s_endpgm")
    e("K1_WT:")
    I("s_sub_u32 s20, s20, 3072")
    I("v_and_b32 v1, 15, v63")
    I("v_lshrrev_b32 v2, 4, v63")
    I("s_cmp_ge_u32 s20, 704")
    I("s_cbranch_scc1 K1_WT_DOWN")
    I("s_cmp_ge_u32 s20, 352")
    I("s_cselect_b32 s48, 1, 0")
    I("s_cselect_b32 s40, s14, s12")
    I("s_cselect_b32 s41, s15, s13")
    I(f"s_mov_b32 s42, {D*F*2}")
    I("s_mov_b32 s43, 0x00020000")
    I("s_mul_i32 s49, s48, 352")
    I("s_sub_u32 s49, s20, s49")
    I("s_and_b32 s51, s49, 15")
    I("s_lshr_b32 s50, s49, 4")
    I("s_mul_i32 s52, s51, 88064")
    I("s_lshl_b32 s53, s50, 7")
    I("s_add_u32 s52, s52, s53")
    I("s_movk_i32 s45, 0x5600")
    I("v_mul_u32_u24 v4, s45, v2")
    I("v_lshl_add_u32 v4, v1, 3, v4")
    I("s_movk_i32 s45, 2752")
    I("s_mul_i32 s53, s48, 88")
    I("s_lshl_b32 s54, s50, 2")
    I("s_add_u32 s53, s53, s54")
    I("s_lshl_b32 s53, s53, 4")
    I("s_add_u32 s53, s53, s51")
    I("s_lshl_b32 s53, s53, 10")
    I("s_movk_i32 s55, 0x4000")
    I("s_branch K1_WT_GO")
    e("K1_WT_DOWN:")
    I("s_sub_u32 s49, s20, 704")
    I("s_mov_b32 s40, s16")
    I("s_mov_b32 s41, s17")
    I(f"s_mov_b32 s42, {D*F*2}")
    I("s_mov_b32 s43, 0x00020000")
    I("s_lshr_b32 s51, s49, 3")
    I("s_and_b32 s50, s49, 7")
    I("s_lshl_b32 s52, s51, 15")
    I("s_lshl_b32 s53, s50, 7")
    I("s_add_u32 s52, s52, s53")
    I("v_lshlrev_b32 v4, 13, v2")
    I("v_lshl_add_u32 v4, v1, 3, v4")
    I("s_movk_i32 s45, 1024")
    I(f"s_mul_i32 s53, s50, {4*KS2}")
    I("s_add_u32 s53, s53, s51")
    I("s_lshl_b32 s53, s53, 10")
    I(f"s_add_u32 s53, s53, {WS_WD-WS_WGU}")
    I(f"s_mov_b32 s55, {KS2*1024}")
    e("K1_WT_GO:")
    srd_off(36, 18, 19, WS_WGU, (WS_H-WS_WGU))
    for j in range(8):
        I(f"buffer_load_dwordx2 v[{10+2*j}:{11+2*j}], v4, s[40:43], s52 offen")
        if j < 7: I("s_add_u32 s52, s52, s45")
    I("v_lshrrev_b32 v5, 2, v1")
    I("v_mul_lo_u32 v5, v5, s55")
    I("v_and_b32 v6, 3, v1")
    I("v_lshl_add_u32 v5, v6, 6, v5")
    I("v_lshl_add_u32 v5, v2, 8, v5")
    I("s_mov_b32 s46, 0x05040100")
    I("s_mov_b32 s47, 0x07060302")
    I("s_waitcnt vmcnt(0)")
    for c in range(4):
        for j in range(4):
            I(f"v_perm_b32 v{30+4*c+j}, v{10+4*j+2+(c>>1)}, v{10+4*j+(c>>1)}, s{46+(c&1)}")
        I(f"buffer_store_dwordx4 v[{30+4*c}:{33+4*c}], v5, s[36:39], s53 offen offset:{16*c}")
    e("K1_WT_END:")
    if K1STAMP: stamp(3, 110)
    I("s_endpgm")
    kdesc(name, 112)


NG1 = 248
STG = 20480
import os
NS = int(os.environ.get('NS', '4'))
def gemm1_part():
    e("K2_GEMM:")
    stamp_init(30, 60); stamp(0, 60)
    srd_off(36, 4, 5, WS_XN, 128*16*1024)
    srd_off(16, 4, 5, WS_H, 128*KS2*1024)
    I("s_and_b32 s22, s2, 7")
    I("s_mul_i32 s22, s22, 31")
    I("s_lshr_b32 s23, s2, 3")
    I("s_add_u32 s22, s22, s23")
    I("s_cmp_ge_u32 s22, 242")
    I("s_cbranch_scc1 K2_END")
    I("s_cmp_ge_u32 s22, 132")
    I("s_cbranch_scc1 K2_G_M5")
    I("s_cmp_ge_u32 s22, 66")
    I("s_cselect_b32 s23, 66, 0")
    I("s_cselect_b32 s24, 6, 0")
    I("s_sub_u32 s23, s22, s23")
    I("s_mul_i32 s21, s23, 43691")
    I("s_lshr_b32 s21, s21, 18")
    I("s_mul_i32 s20, s21, 6")
    I("s_sub_u32 s20, s23, s20")
    I("s_add_u32 s20, s20, s24")
    I("s_branch K2_G_MD")
    e("K2_G_M5:")
    I("s_sub_u32 s22, s22, 132")
    I("s_cmp_ge_u32 s22, 55")
    I("s_cselect_b32 s23, 55, 0")
    I("s_cselect_b32 s24, 17, 12")
    I("s_sub_u32 s23, s22, s23")
    I("s_mul_i32 s21, s23, 52429")
    I("s_lshr_b32 s21, s21, 18")
    I("s_mul_i32 s20, s21, 5")
    I("s_sub_u32 s20, s23, s20")
    I("s_add_u32 s20, s20, s24")
    e("K2_G_MD:")
    I("s_lshr_b32 s22, s30, 1")
    I("s_and_b32 s23, s30, 1")
    I("s_waitcnt lgkmcnt(0)")
    srd_off(8, 4, 5, WS_WGU, 2*NFT*16*1024)
    I("v_lshlrev_b32 v2, 4, v63")
    I("s_lshl_b32 s24, s20, 2")
    I("s_add_u32 s24, s24, s30")
    I("s_lshl_b32 s24, s24, 14")
    I(f"s_add_u32 s44, s24, {88*16384}")
    I("s_mul_i32 s25, s21, 12")
    I("s_mul_i32 s26, s30, 3")
    I("s_add_u32 s25, s25, s26")
    I("s_lshl_b32 s25, s25, 14")
    I("s_add_u32 s26, s25, 16384")
    I("s_add_u32 s27, s25, 32768")
    I("s_lshl_b32 s28, s30, 10")
    I("s_mul_i32 s29, s30, 3072")
    I("s_add_u32 s29, s29, 8192")
    def dma(st):
        sb = st*STG
        I(f"s_add_u32 m0, s28, {sb}")
        I("s_nop 0")
        I("buffer_load_dwordx4 v2, s[8:11], s24 offen lds")
        I(f"s_add_u32 m0, s28, {sb+4096}")
        I("s_nop 0")
        I("buffer_load_dwordx4 v2, s[8:11], s44 offen lds")
        I(f"s_add_u32 m0, s29, {sb}")
        I("s_nop 0")
        I("buffer_load_dwordx4 v2, s[36:39], s25 offen lds")
        I(f"s_add_u32 m0, s29, {sb+1024}")
        I("s_nop 0")
        I("buffer_load_dwordx4 v2, s[36:39], s26 offen lds")
        I(f"s_add_u32 m0, s29, {sb+2048}")
        I("s_nop 0")
        I("buffer_load_dwordx4 v2, s[36:39], s27 offen lds")
        I("s_add_u32 s24, s24, 1024")
        I("s_add_u32 s44, s44, 1024")
        I("s_add_u32 s25, s25, 1024")
        I("s_add_u32 s26, s26, 1024")
        I("s_add_u32 s27, s27, 1024")
    for st in range(NS-1): dma(st)
    I("s_lshl_b32 s31, s23, 11")
    I("v_add_u32 v3, s31, v2")
    I("s_mul_i32 s31, s22, 6144")
    I("s_add_u32 s31, s31, 8192")
    I("v_add_u32 v5, s31, v2")
    I(f"v_add_u32 v6, {3*STG}, v3")
    I(f"v_add_u32 v8, {3*STG}, v5")
    for i in range(96):
        I(f"v_mov_b32 v{64+i}, 0")
    FR = [160, 200]
    def fread(st, fs):
        hi = st >= 3
        b = (st % 3)*STG
        va = [6, 7] if hi else [3, 4]
        vb = 8 if hi else 5
        f = FR[fs]
        for mat in range(2):
            for t in range(2):
                r = f + (mat*2+t)*4
                I(f"ds_read_b128 v[{r}:{r+3}], v{va[0]} offset:{b + mat*4096 + t*1024}")
        for bb in range(6):
            r = f + 16 + 4*bb
            I(f"ds_read_b128 v[{r}:{r+3}], v{vb} offset:{b + bb*1024}")
    def mfmas(fs):
        f = FR[fs]
        for bb in range(6):
            for a in range(4):
                acc = 64 + (a*6+bb)*4
                I(f"v_mfma_f32_16x16x32_bf16 v[{acc}:{acc+3}], v[{f+4*a}:{f+4*a+3}], v[{f+16+4*bb}:{f+16+4*bb+3}], v[{acc}:{acc+3}]")
    I(f"s_waitcnt vmcnt({5*(NS-2)})")
    I("s_barrier")
    stamp(1, 60)
    fread(0, 0)
    def capture(fn, *args):
        global out
        save = out; out = []
        fn(*args)
        got = out; out = save
        return got
    for ks in range(16):
        fill = []
        if ks < 15:
            I(f"s_waitcnt vmcnt({5*(min(15, ks+NS-2)-(ks+1))})")
            I("s_barrier")
            if ks+NS-1 <= 15:
                d = capture(dma, (ks+NS-1) % NS)
                fill += [d[3*i:3*i+3] for i in range(5)] + [d[15:]]
            rds = capture(fread, (ks+1) % NS, (ks+1)&1)
            rr = [[x] for x in rds]
            merged = []
            while rr or fill:
                if rr: merged.append(rr.pop(0))
                if rr: merged.append(rr.pop(0))
                if fill: merged.append(fill.pop(0))
            fill = merged
        I("s_waitcnt lgkmcnt(0)")
        mm = capture(mfmas, ks&1)
        for i, m1 in enumerate(mm):
            out.append(m1)
            if i >= 1 and fill:
                out.extend(fill.pop(0))
        for f1 in fill: out.extend(f1)
    stamp(2, 60)
    I("s_lshl_b32 s26, s20, 1")
    I("s_add_u32 s26, s26, s23")
    I(f"s_cmp_ge_u32 s26, {KS2}")
    I("s_cbranch_scc1 K2_END")
    I("s_mul_i32 s28, s21, 12")
    I("s_mul_i32 s29, s22, 6")
    I("s_add_u32 s28, s28, s29")
    I(f"s_mul_i32 s28, s28, {KS2}")
    I("s_add_u32 s28, s28, s26")
    I("s_lshl_b32 s28, s28, 10")
    I("v_and_b32 v6, 15, v63")
    I("v_lshlrev_b32 v6, 4, v6")
    I("v_lshrrev_b32 v7, 5, v63")
    I("v_lshl_add_u32 v6, v7, 8, v6")
    I("v_bfe_u32 v7, v63, 4, 1")
    I("v_lshl_add_u32 v6, v7, 3, v6")
    I("s_nop 7")
    I("s_nop 7")
    for bb in range(6):
        for a in range(2):
            g = 64 + (a*6+bb)*4
            u = 64 + ((a+2)*6+bb)*4
            I(f"v_cvt_pk_bf16_f32 v8, v{g}, v{g+1}")
            I(f"v_cvt_pk_bf16_f32 v9, v{g+2}, v{g+3}")
            I(f"v_cvt_pk_bf16_f32 v18, v{u}, v{u+1}")
            I(f"v_cvt_pk_bf16_f32 v19, v{u+2}, v{u+3}")
            I("v_lshlrev_b32 v10, 16, v8")
            I("v_and_b32 v11, 0xffff0000, v8")
            I("v_lshlrev_b32 v12, 16, v9")
            I("v_and_b32 v13, 0xffff0000, v9")
            for r in range(4):
                I(f"v_mul_f32 v{14+r}, 0xbfb8aa3b, v{10+r}")
            for r in range(4):
                I(f"v_exp_f32 v{14+r}, v{14+r}")
            I("s_nop 0")
            for r in range(4):
                I(f"v_add_f32 v{14+r}, 1.0, v{14+r}")
            for r in range(4):
                I(f"v_rcp_f32 v{20+r}, v{14+r}")
            I("s_nop 0")
            for r in range(4):
                I(f"v_mul_f32 v24, v{10+r}, v{20+r}")
                I(f"v_fma_f32 v25, -v24, v{14+r}, v{10+r}")
                I(f"v_fma_f32 v{10+r}, v25, v{20+r}, v24")
            I("v_cvt_pk_bf16_f32 v8, v10, v11")
            I("v_cvt_pk_bf16_f32 v9, v12, v13")
            I("v_lshlrev_b32 v10, 16, v8")
            I("v_and_b32 v11, 0xffff0000, v8")
            I("v_lshlrev_b32 v12, 16, v9")
            I("v_and_b32 v13, 0xffff0000, v9")
            I("v_lshlrev_b32 v14, 16, v18")
            I("v_and_b32 v15, 0xffff0000, v18")
            I("v_lshlrev_b32 v16, 16, v19")
            I("v_and_b32 v17, 0xffff0000, v19")
            for r in range(4):
                I(f"v_mul_f32 v{10+r}, v{10+r}, v{14+r}")
            I("v_cvt_pk_bf16_f32 v26, v10, v11")
            I("v_cvt_pk_bf16_f32 v27, v12, v13")
            I(f"buffer_store_dwordx2 v[26:27], v6, s[16:19], s28 offen offset:{a*512}")
            I("s_nop 1")
        if bb < 5:
            I(f"s_add_u32 s28, s28, {KS2*1024}")
    stamp(3, 60)
    e("K2_END:")
    I("s_endpgm")


CH_BYTES = 8*4352 + 5120
KVIMG = 8*4352
def conv_part():
    e("K2_CONV:")
    I(f"s_sub_u32 s20, s2, {NG1}")
    I("s_cmp_ge_u32 s20, 256")
    I("s_cbranch_scc1 K2_END")
    I("s_load_dwordx4 s[24:27], s[0:1], 32")
    I("s_lshr_b32 s21, s30, 1")
    I("s_lshl_b32 s22, s20, 1")
    I("s_add_u32 s22, s22, s21")
    I("s_and_b32 s23, s30, 1")
    I(f"s_mul_i32 s28, s21, {CH_BYTES}")
    I("s_lshl_b32 s29, s22, 12")
    I("s_waitcnt lgkmcnt(0)")
    I("s_add_u32 s8, s24, s29")
    I("s_addc_u32 s9, s25, 0")
    I("s_mov_b32 s10, 4096")
    I("s_mov_b32 s11, 0x00020000")
    I("s_add_u32 s12, s4, s29")
    I("s_addc_u32 s13, s5, 0")
    I(f"s_add_u32 s12, s12, {WS_KVR}")
    I("s_addc_u32 s13, s13, 0")
    I("s_mov_b32 s14, 4096")
    I("s_mov_b32 s15, 0x00020000")
    I("s_add_u32 s16, s4, s29")
    I("s_addc_u32 s17, s5, 0")
    I(f"s_add_u32 s16, s16, {WS_Y2T}")
    I("s_addc_u32 s17, s17, 0")
    I("s_mov_b32 s18, 4096")
    I("s_mov_b32 s19, 0x00020000")
    srd(36, 26, 27, 1024)
    I("s_lshl_b32 s31, s23, 6")
    I("v_add_u32 v1, s31, v63")
    I("v_lshlrev_b32 v2, 4, v1")
    for it in range(2):
        I(f"buffer_load_dwordx4 v[{100+4*it}:{103+4*it}], v2, s[12:15], 0 offen offset:{2048*it}")
    for it in range(2):
        for a in range(4):
            I(f"buffer_load_dwordx4 v[{110+20*it+4*a}:{113+20*it+4*a}], v2, s[8:11], 0 offen offset:{2048*it+4*a}")
        I(f"buffer_load_dword v{126+20*it}, v2, s[8:11], 0 offen offset:{2048*it+28}")
    I("v_mov_b32 v3, 0")
    I("buffer_load_dwordx4 v[150:153], v3, s[8:11], 0 offen")
    I("s_lshl_b32 s31, s22, 1")
    I("v_mov_b32 v3, s31")
    I("buffer_load_ushort v154, v3, s[36:39], 0 offen")
    def copybase(dst, r, tmp):
        I(f"v_add_u32 v{tmp}, 7, v{r}")
        I(f"v_and_b32 v{tmp}, 7, v{tmp}")
        I(f"v_lshrrev_b32 v{dst}, 1, v{tmp}")
        I(f"v_lshlrev_b32 v{dst}, 2, v{dst}")
        I(f"v_and_b32 v{tmp}, 1, v{tmp}")
        I(f"v_add_u32 v{dst}, v{dst}, v{tmp}")
        I(f"v_min_u32 v{dst}, 12, v{dst}")
        I(f"v_lshlrev_b32 v{dst}, 4, v{dst}")
        I(f"s_movk_i32 s31, 4352")
        I(f"v_mul_u32_u24 v{tmp}, s31, v{r}")
        I(f"v_add_u32 v{dst}, v{dst}, v{tmp}")
    for i in range(4):
        I(f"v_mov_b32 v{4+i}, 0")
    I("v_lshrrev_b32 v8, 2, v63")
    I("v_and_b32 v8, 7, v8")
    copybase(9, 8, 10)
    I("v_and_b32 v10, 3, v63")
    I("v_lshl_add_u32 v9, v10, 4, v9")
    I("v_add_u32 v9, s28, v9")
    I("s_cmp_lg_u32 s23, 0")
    I("s_cbranch_scc1 K2_C_NOZ")
    I("v_cmp_gt_u32 vcc, 32, v63")
    I("s_and_saveexec_b64 s[32:33], vcc")
    I("ds_write_b128 v9, v[4:7]")
    I("s_mov_b64 exec, s[32:33]")
    I("s_branch K2_C_Z2")
    e("K2_C_NOZ:")
    I("v_add_u32 v9, 256, v63")
    I("v_bfe_u32 v10, v9, 3, 2")
    I("v_xor_b32 v9, v9, v10")
    I("v_lshlrev_b32 v9, 4, v9")
    I(f"v_add_u32 v9, s28, v9")
    I(f"ds_write_b128 v9, v[4:7] offset:{KVIMG}")
    e("K2_C_Z2:")
    I("s_waitcnt vmcnt(0)")
    I("s_cmp_lg_u32 s23, 0")
    I("s_cbranch_scc1 K2_C_NOP")
    copybase(9, 63, 10)
    I("v_lshlrev_b32 v10, 1, v63")
    I("v_sub_u32 v9, v9, v10")
    I("v_add_u32 v9, 64, v9")
    I("v_add_u32 v9, s28, v9")
    I("v_cmp_gt_u32 vcc, 8, v63")
    I("s_and_saveexec_b64 s[32:33], vcc")
    I("ds_write_b128 v9, v[150:153]")
    I("s_mov_b64 exec, s[32:33]")
    e("K2_C_NOP:")
    CR = [12,0,1,4,5,8,9,12]
    for it in range(2):
        g = 110+20*it
        for a in range(4):
            for i in range(3):
                I(f"v_alignbyte_b32 v{160+4*a+i}, v{g+4*a+i+1}, v{g+4*a+i}, 2")
            nxt = g+4*(a+1)+3 if a < 3 else g+16
            I(f"v_alignbyte_b32 v{160+4*a+3}, v{nxt}, v{g+4*a+3}, 2")
        I("v_add_u32 v9, s28, v2")
        for a in range(4):
            r0 = 2*a; r1 = 2*a+1
            I(f"ds_write_b128 v9, v[{g+4*a}:{g+4*a+3}] offset:{r0*4352+16*CR[r0]+64+2048*it}")
            I(f"ds_write_b128 v9, v[{160+4*a}:{160+4*a+3}] offset:{r1*4352+16*CR[r1]+64+2048*it}")
    for it in range(2):
        I(f"v_add_u32 v9, {128*it}, v1")
        I("v_bfe_u32 v10, v9, 3, 2")
        I("v_xor_b32 v9, v9, v10")
        I("v_lshlrev_b32 v9, 4, v9")
        I("v_add_u32 v9, s28, v9")
        I(f"ds_write_b128 v9, v[{100+4*it}:{103+4*it}] offset:{KVIMG}")
    I("v_and_b32 v8, 15, v63")
    I("v_add_u32 v8, 1, v8")
    I("v_and_b32 v11, 7, v8")
    copybase(12, 11, 10)
    I("v_lshrrev_b32 v8, 3, v8")
    I("v_lshrrev_b32 v10, 4, v63")
    I("v_add_u32 v8, v8, v10")
    I("v_lshl_add_u32 v12, v8, 4, v12")
    I("v_add_u32 v12, s28, v12")
    I("v_and_b32 v8, 15, v63")
    I("v_lshlrev_b32 v8, 2, v8")
    I("v_sub_u32 v8, v10, v8")
    I("v_add_u32 v8, 252, v8")
    for sl in range(2):
        if sl == 0:
            I("s_lshl_b32 s31, s23, 6")
        else:
            I("s_sub_u32 s31, 3, s23")
            I("s_lshl_b32 s31, s31, 6")
        I(f"v_subrev_u32 v9, s31, v8")
        for t in range(8):
            I(f"v_add_u32 v10, {4*t}, v9")
            I("v_bfe_u32 v11, v10, 3, 2")
            I("v_xor_b32 v10, v10, v11")
            I(f"v_lshlrev_b32 v{16+8*sl+t}, 4, v10")
            I(f"v_add_u32 v{16+8*sl+t}, s28, v{16+8*sl+t}")
    for i in range(16):
        I(f"v_mov_b32 v{64+i}, 0")
    I("s_waitcnt lgkmcnt(0)")
    I("s_barrier")
    FS = [32, 96]
    def rd(t, st, both):
        I(f"ds_read_b128 v[{FS[st]}:{FS[st]+3}], v12 offset:{64*t}")
        I(f"ds_read_b128 v[{FS[st]+4}:{FS[st]+7}], v12 offset:{64*t+32}")
        if both:
            I(f"ds_read_b128 v[{FS[st]+8}:{FS[st]+11}], v{16+(t&7)} offset:{KVIMG+512*(t>>3)}")
        I(f"ds_read_b128 v[{FS[st]+12}:{FS[st]+15}], v{24+(t&7)} offset:{KVIMG+512*(t>>3)}")
    def mm(st, both):
        f = FS[st]
        if both:
            I(f"v_mfma_f32_16x16x32_bf16 v[64:67], v[{f}:{f+3}], v[{f+8}:{f+11}], v[64:67]")
            I(f"v_mfma_f32_16x16x32_bf16 v[68:71], v[{f+4}:{f+7}], v[{f+8}:{f+11}], v[68:71]")
        I(f"v_mfma_f32_16x16x32_bf16 v[72:75], v[{f}:{f+3}], v[{f+12}:{f+15}], v[72:75]")
        I(f"v_mfma_f32_16x16x32_bf16 v[76:79], v[{f+4}:{f+7}], v[{f+12}:{f+15}], v[76:79]")
    def macro(both):
        rd(0, 0, both)
        for t in range(16):
            if t < 15:
                rd(t+1, (t+1)&1, both)
                I(f"s_waitcnt lgkmcnt({4 if both else 3})")
            else:
                I("s_waitcnt lgkmcnt(0)")
            mm(t&1, both)
        I("v_add_u32 v12, 1024, v12")
        for i in range(16):
            I(f"v_add_u32 v{16+i}, 1024, v{16+i}")
    I("s_add_u32 s34, s23, 1")
    e("K2_C_L1:")
    macro(True)
    I("s_sub_u32 s34, s34, 1")
    I("s_cmp_gt_u32 s34, 0")
    I("s_cbranch_scc1 K2_C_L1")
    I("s_lshl_b32 s34, s23, 1")
    I("s_sub_u32 s34, 3, s34")
    e("K2_C_L2:")
    macro(False)
    I("s_sub_u32 s34, s34, 1")
    I("s_cmp_gt_u32 s34, 0")
    I("s_cbranch_scc1 K2_C_L2")
    I("v_lshlrev_b32 v154, 16, v154")
    I("v_and_b32 v8, 15, v63")
    I("v_lshrrev_b32 v10, 4, v63")
    I("s_nop 7")
    for sl in range(2):
        for m in range(2):
            acc = 64 + (sl*2+m)*4
            if sl == 0:
                I("s_lshl_b32 s31, s23, 9")
            else:
                I("s_sub_u32 s31, 3, s23")
                I("s_lshl_b32 s31, s31, 9")
            I(f"v_lshlrev_b32 v9, 5, v8")
            I(f"v_lshl_add_u32 v9, v10, 2, v9")
            I(f"v_add_u32 v9, s31, v9")
            if m: I("v_add_u32 v9, 16, v9")
            I("v_sub_u32 v11, 2044, v9")
            I("v_lshrrev_b32 v13, 3, v11")
            I("v_bfe_u32 v14, v13, 3, 2")
            I("v_xor_b32 v13, v13, v14")
            I("v_lshlrev_b32 v13, 4, v13")
            I("v_and_b32 v14, 4, v11")
            I("v_lshl_add_u32 v13, v14, 1, v13")
            I("v_add_u32 v13, s28, v13")
            I(f"ds_read_b64 v[14:15], v13 offset:{KVIMG}")
            I("s_waitcnt lgkmcnt(0)")
            I("v_lshlrev_b32 v83, 16, v14")
            I("v_and_b32 v82, 0xffff0000, v14")
            I("v_lshlrev_b32 v81, 16, v15")
            I("v_and_b32 v80, 0xffff0000, v15")
            for r in range(4):
                I(f"v_mul_f32 v{80+r}, v{80+r}, v154")
                bf_round(80+r, 80+r)
                bf_round(84, acc+r)
                I(f"v_add_f32 v{80+r}, v{80+r}, v84")
            I("v_cvt_pk_bf16_f32 v86, v80, v81")
            I("v_cvt_pk_bf16_f32 v87, v82, v83")
            I("v_lshlrev_b32 v9, 1, v9")
            I("buffer_store_dwordx2 v[86:87], v9, s[16:19], 0 offen")
            I("s_nop 1")
    I("s_endpgm")

def k2():
    name = "k2_gemm1_kernel"
    kstart(name)
    I("s_load_dwordx2 s[4:5], s[0:1], 96")
    I("v_lshrrev_b32 v1, 6, v0")
    I("v_and_b32 v63, 63, v0")
    I("s_nop 0")
    I("v_readfirstlane_b32 s30, v1")
    I("s_waitcnt lgkmcnt(0)")
    I(f"s_cmp_lt_u32 s2, {NG1}")
    I("s_cbranch_scc1 K2_GEMM")
    conv_part()
    gemm1_part()
    kdesc(name, 256)

def k3():
    name = "k3_gemm2_kernel"
    kstart(name)
    I("s_load_dwordx2 s[4:5], s[0:1], 96")
    I("s_load_dwordx2 s[6:7], s[0:1], 0")
    I("s_load_dwordx2 s[34:35], s[0:1], 80")
    I("v_lshrrev_b32 v1, 6, v0")
    I("v_and_b32 v63, 63, v0")
    I("s_nop 0")
    I("v_readfirstlane_b32 s30, v1")
    I("s_waitcnt lgkmcnt(0)")
    I("s_cmp_ge_u32 s2, 256")
    I("s_cbranch_scc1 K3_END")
    srd_off(8, 4, 5, WS_WD, 32*KS2*1024)
    srd_off(12, 4, 5, WS_H, 128*KS2*1024)
    I("s_lshr_b32 s20, s2, 5")
    I("s_and_b32 s21, s2, 7")
    I("s_lshl_b32 s21, s21, 2")
    I("s_bfe_u32 s22, s2, 0x20003")
    I("s_add_u32 s21, s21, s22")
    I(f"s_mul_i32 s24, s20, {4*KS2}")
    I("s_add_u32 s24, s24, s30")
    I("s_lshl_b32 s24, s24, 10")
    I(f"s_mul_i32 s25, s21, {4*KS2}")
    I("s_add_u32 s25, s25, s30")
    I("s_lshl_b32 s25, s25, 10")
    I("v_lshlrev_b32 v1, 4, v63")
    for a in range(1,4):
        I(f"v_add_u32 v{1+a}, {a*KS2*1024}, v1")
    srd(16, 6, 7, S*D*2)
    srd_off(36, 4, 5, WS_XN, 128*16*1024)
    srd_off(40, 4, 5, WS_Y2T, 512*4096)
    srd(44, 34, 35, S*D*2)
    I("v_and_b32 v6, 15, v63")
    I("v_lshrrev_b32 v7, 4, v63")
    I("v_lshlrev_b32 v8, 10, v6")
    I("v_lshl_add_u32 v8, v7, 3, v8")
    I("s_lshl_b32 s48, s21, 16")
    I("s_lshl_b32 s49, s20, 7")
    I("s_add_u32 s48, s48, s49")
    I("s_lshl_b32 s49, s30, 5")
    I("s_add_u32 s48, s48, s49")
    I("v_lshlrev_b32 v9, 4, v6")
    I("v_lshrrev_b32 v10, 1, v7")
    I("v_lshl_add_u32 v9, v10, 8, v9")
    I("v_and_b32 v10, 1, v7")
    I("v_lshl_add_u32 v9, v10, 3, v9")
    I("s_lshl_b32 s49, s21, 6")
    I("s_lshl_b32 s50, s20, 1")
    I("s_add_u32 s49, s49, s50")
    I("s_lshr_b32 s50, s30, 1")
    I("s_add_u32 s49, s49, s50")
    I("s_lshl_b32 s49, s49, 10")
    I("s_and_b32 s50, s30, 1")
    I("s_lshl_b32 s50, s50, 9")
    I("s_add_u32 s49, s49, s50")
    I("v_lshlrev_b32 v11, 14, v7")
    I("v_lshl_add_u32 v11, v6, 1, v11")
    I("s_lshl_b32 s50, s20, 18")
    I("s_lshl_b32 s51, s30, 16")
    I("s_add_u32 s50, s50, s51")
    I("s_lshl_b32 s51, s21, 7")
    I("s_add_u32 s50, s50, s51")
    for bb in range(4):
        I(f"s_add_u32 s52, s48, {16384*bb}")
        I(f"buffer_load_dwordx2 v[{224+8*bb}:{225+8*bb}], v8, s[16:19], s52 offen")
        I(f"s_add_u32 s52, s49, {16384*bb}")
        I(f"buffer_load_dwordx2 v[{226+8*bb}:{227+8*bb}], v9, s[36:39], s52 offen")
        for r in range(4):
            I(f"s_add_u32 s52, s50, {32*bb+4096*r}")
            I(f"buffer_load_ushort v{228+8*bb+r}, v11, s[40:43], s52 offen")
    for i in range(64):
        I(f"v_mov_b32 v{64+i}, 0")
    FR = [128, 160, 192]
    def ld(st):
        for a in range(4):
            I(f"buffer_load_dwordx4 v[{FR[st]+4*a}:{FR[st]+4*a+3}], v{1+a}, s[8:11], s24 offen")
        for a in range(4):
            I(f"buffer_load_dwordx4 v[{FR[st]+16+4*a}:{FR[st]+16+4*a+3}], v{1+a}, s[12:15], s25 offen")
        I("s_add_u32 s24, s24, 4096")
        I("s_add_u32 s25, s25, 4096")
    def mf(st):
        for bb in range(4):
            for a in range(4):
                acc = 64 + (a*4+bb)*4
                I(f"v_mfma_f32_16x16x32_bf16 v[{acc}:{acc+3}], v[{FR[st]+4*a}:{FR[st]+4*a+3}], v[{FR[st]+16+4*bb}:{FR[st]+16+4*bb+3}], v[{acc}:{acc+3}]")
    I("s_cmp_lt_u32 s30, 3")
    I("s_cselect_b32 s26, 11, 10")
    ld(0)
    ld(1)
    I("s_mov_b32 s27, 0")
    e("K3_LOOP:")
    for st in range(3):
        I("s_add_u32 s28, s27, 2")
        I("s_cmp_lt_u32 s28, s26")
        I(f"s_cbranch_scc0 K3_NOLD{st}")
        ld((st+2)%3)
        I("s_waitcnt vmcnt(16)")
        I(f"s_branch K3_GO{st}")
        e(f"K3_NOLD{st}:")
        I("s_waitcnt vmcnt(0)")
        e(f"K3_GO{st}:")
        mf(st)
        I("s_add_u32 s27, s27, 1")
        I("s_cmp_ge_u32 s27, s26")
        I("s_cbranch_scc1 K3_DONE")
    I("s_branch K3_LOOP")
    e("K3_DONE:")
    I("s_lshl_b32 s26, s30, 14")
    I("v_add_u32 v5, s26, v1")
    I("s_nop 7")
    I("s_nop 7")
    for t in range(16):
        I(f"ds_write_b128 v5, v[{64+4*t}:{64+4*t+3}] offset:{t*1024}")
    I("s_waitcnt lgkmcnt(0)")
    I("s_barrier")
    I("s_lshl_b32 s26, s30, 12")
    I("v_add_u32 v5, s26, v1")
    for bb in range(4):
        for ww in range(4):
            I(f"ds_read_b128 v[{128+16*bb+4*ww}:{128+16*bb+4*ww+3}], v5 offset:{ww*16384 + bb*1024}")
    I("s_waitcnt lgkmcnt(0)")
    for bb in range(4):
        for r in range(4):
            b0 = 128+16*bb+r
            I(f"v_add_f32 v{b0}, v{b0}, v{b0+4}")
            I(f"v_add_f32 v{b0+8}, v{b0+8}, v{b0+12}")
            I(f"v_add_f32 v{64+4*bb+r}, v{b0}, v{b0+8}")
    for bb in range(4):
        P = 224+8*bb
        I(f"v_lshlrev_b32 v20, 16, v{P}")
        I(f"v_and_b32 v21, 0xffff0000, v{P}")
        I(f"v_lshlrev_b32 v22, 16, v{P+1}")
        I(f"v_and_b32 v23, 0xffff0000, v{P+1}")
        I(f"v_lshlrev_b32 v24, 16, v{P+2}")
        I(f"v_and_b32 v25, 0xffff0000, v{P+2}")
        I(f"v_lshlrev_b32 v26, 16, v{P+3}")
        I(f"v_and_b32 v27, 0xffff0000, v{P+3}")
        for r in range(4):
            I(f"v_lshlrev_b32 v{16+r}, 16, v{P+4+r}")
            I(f"v_mul_f32 v{16+r}, v{24+r}, v{16+r}")
            bf_round(16+r, 16+r)
            I(f"v_add_f32 v{16+r}, v{20+r}, v{16+r}")
            bf_round(16+r, 16+r)
            bf_round(28, 64+4*bb+r)
            I(f"v_add_f32 v{16+r}, v{16+r}, v28")
        I(f"v_cvt_pk_bf16_f32 v{32+2*bb}, v16, v17")
        I(f"v_cvt_pk_bf16_f32 v{33+2*bb}, v18, v19")
        I(f"s_add_u32 s52, s48, {16384*bb}")
        I(f"buffer_store_dwordx2 v[{32+2*bb}:{33+2*bb}], v8, s[44:47], s52 offen")
    e("K3_END:")
    I("s_endpgm")
    kdesc(name, 256)

LAUNCH = []
K1STAMP = False
def main():
    global LAUNCH
    which = sys.argv[1] if len(sys.argv) > 1 else "all"
    global STAMPS, K1STAMP
    STAMPS = (which in ("stamps", "stamps1"))
    K1STAMP = (which == "stamps1")
    LAUNCH = ["; @launch kernel=k1_prep_kernel grid=(1030,1,1) block=(256,1,1) lds=0",
              f"; @launch kernel=k2_gemm1_kernel grid=(504,1,1) block=(256,1,1) lds={NS*STG}",
              "; @launch kernel=k3_gemm2_kernel grid=(256,1,1) block=(256,1,1) lds=65536"]
    header()
    k1()
    k2()
    k3()
    open(sys.argv[2] if len(sys.argv) > 2 else "out.s", "w").write("\n".join(out) + "\n")

if __name__ == "__main__":
    main()
```
